```python
import torch

def _softmax(x, axis=-1):
    return torch.softmax(x, dim=axis)
def _gelu(x):
    return torch.nn.functional.gelu(x, approximate="tanh")
def _silu(x):
    return torch.nn.functional.silu(x)
def _sigmoid(x):
    return torch.sigmoid(x)
def _layernorm(x, axis=-1, eps=1e-5):
    m = x.mean(dim=axis, keepdim=True)
    v = x.var(dim=axis, keepdim=True, unbiased=False)
    return (x - m) / torch.sqrt(v + eps)
def _scatter_add(tgt, idx, src, axis=0):
    return tgt.clone().index_add_(axis, idx, src)
def _segment_sum(src, seg, n):
    out = torch.zeros((n,) + src.shape[1:], dtype=src.dtype)
    return out.index_add_(0, seg, src)
def _pad(x, pw):
    flat = tuple(v for pair in reversed(pw) for v in pair)
    return torch.nn.functional.pad(x, flat)

kernel_name = 'recurrent_scan__gqa_block_cached__glu_gated_bilinear__prompt'

def setup_inputs():

    _w = (lambda a: (lambda t: t.to(torch.bfloat16) if t.is_floating_point() else t)(torch.as_tensor(a)))
    def _A_setup():
        B, Sq, D = 1, 2048, 640
        Hq, Hkv, Sk, Dh = 32, 32, 2048, 128
        assert Hq % Hkv == 0, (Hq, Hkv)
        return {
            "x": _w((lambda *s: torch.randn(*s, dtype=torch.bfloat16) * 0.05)(B, Sq, D)),
            "k_cache": _w((lambda *s: torch.randn(*s, dtype=torch.bfloat16) * 1.6)(B, Hkv, Sk, Dh)),
            "v_cache": _w((lambda *s: torch.randn(*s, dtype=torch.bfloat16) * 1.6)(B, Hkv, Sk, Dh)),
            "wq": _w((lambda *s: torch.randn(*s, dtype=torch.bfloat16) * 1.6)(D, Hq * Dh) * (D ** -0.5)),
            "wo": _w((lambda *s: torch.randn(*s, dtype=torch.bfloat16) * 1.6)(Hq * Dh, D) * ((Hq * Dh) ** -0.5)),
        }
    _A_in = _A_setup()

    def _B_setup():
        B, S, D, F = 1, 2048, 640, 1728
        return {
            "x": _w((lambda *s: torch.randn(*s, dtype=torch.bfloat16) * 0.05)(B, S, D)),
            "w_gate": _w((lambda *s: torch.randn(*s, dtype=torch.bfloat16) * 0.2)(D, F) * (D ** -0.5)),
            "w_up": _w((lambda *s: torch.randn(*s, dtype=torch.bfloat16) * 0.2)(D, F) * (D ** -0.5)),
            "w_down": _w((lambda *s: torch.randn(*s, dtype=torch.bfloat16) * 0.2)(F, D) * (F ** -0.5)),
        }
    _B_in = _B_setup()

    return {
        "A_x": _A_in["x"],
        "A_k_cache": _A_in["k_cache"],
        "A_v_cache": _A_in["v_cache"],
        "A_wq": _A_in["wq"],
        "A_wo": _A_in["wo"],
        "B_x": _B_in["x"],
        "B_w_gate": _B_in["w_gate"],
        "B_w_up": _B_in["w_up"],
        "B_w_down": _B_in["w_down"],
    }

def reference(A_x, A_k_cache, A_v_cache, A_wq, A_wo, B_x, B_w_gate, B_w_up, B_w_down):
    def _A_ref(x, k_cache, v_cache, wq, wo):
        B, Sq, D = x.shape
        Hq, Dh = 32, 128
        Hkv = k_cache.shape[1]
        rep = Hq // Hkv
        q = (lambda x, *d: x.permute(*d))((x @ wq).reshape(B, Sq, Hq, Dh), 0, 2, 1, 3)
        k = (lambda x, n, axis: torch.repeat_interleave(x, n, dim=axis))(k_cache, rep, axis=1)
        v = (lambda x, n, axis: torch.repeat_interleave(x, n, dim=axis))(v_cache, rep, axis=1)
        scores = torch.einsum("bhqd,bhkd->bhqk", q, k) * (Dh ** -0.5)
        p = _softmax(scores, axis=-1)
        o = torch.einsum("bhqk,bhkd->bhqd", p, v)
        return (lambda x, *d: x.permute(*d))(o, 0, 2, 1, 3).reshape(B, Sq, Hq * Dh) @ wo

    def _B_ref(x, w_gate, w_up, w_down):
        g = torch.einsum("bsd,df->bsf", x, w_gate)
        u = torch.einsum("bsd,df->bsf", x, w_up)
        h = g * u
        return torch.einsum("bsf,fd->bsd", h, w_down)

    x = A_x
    xn = _layernorm(x, axis=-1)
    s = _A_ref(xn, A_k_cache, A_v_cache, A_wq, A_wo)
    g = _silu(_B_ref(xn, B_w_gate, B_w_up, B_w_down))
    return x + s * g
```

```python
import re

TRANS = ("v_exp_f32", "v_log_f32", "v_rcp_f32", "v_rsq_f32", "v_sqrt_f32", "v_sin_f32", "v_cos_f32")


def R(kind, i, n=1):
    return f"{kind}{i}" if n == 1 else f"{kind}[{i}:{i+n-1}]"


def regs_of(tok):
    tok = tok.strip()
    neg = tok.lstrip("-")
    if neg.startswith("abs(") or neg.startswith("|"):
        neg = neg.replace("abs(", "").replace(")", "").replace("|", "")
    m = re.fullmatch(r"([vas])(\d+)", neg)
    if m:
        return [(m.group(1), int(m.group(2)))]
    m = re.fullmatch(r"([vas])\[(\d+):(\d+)\]", neg)
    if m:
        return [(m.group(1), k) for k in range(int(m.group(2)), int(m.group(3)) + 1)]
    if neg in ("m0", "vcc", "exec", "scc"):
        return [(neg, 0)]
    if neg in ("vcc_lo", "vcc_hi"):
        return [("vcc", 0)]
    return []


class Ins:
    def __init__(self, text):
        self.text = text
        t = text.split(";")[0].strip()
        self.op = t.split()[0] if t else ""
        rest = t[len(self.op):].strip()
        toks = [x.strip() for x in rest.split(",")] if rest else []
        mods = []
        if toks:
            last = toks[-1].split()
            toks[-1] = last[0] if last else ""
            mods = last[1:]
        self.toks, self.mods = toks, mods
        op = self.op
        self.kind = "other"
        self.dst, self.src = [], []
        self.srcC = []
        self.passes = 0
        rg = [regs_of(x) for x in toks]
        flat = lambda l: [r for x in l for r in x]
        if op.endswith(":") or op.startswith(".") or not op:
            self.kind = "label"
        elif op.startswith("v_mfma"):
            self.kind = "mfma"
            self.dst = rg[0]
            self.src = rg[1] + rg[2]
            self.srcC = rg[3]
            self.passes = 8 if "32x32" in op else 4
        elif op.startswith("ds_read"):
            self.kind = "ds"; self.dst = rg[0]; self.src = flat(rg[1:])
        elif op.startswith("ds_write"):
            self.kind = "ds"; self.src = flat(rg)
        elif op.startswith("ds_bpermute") or op.startswith("ds_swizzle"):
            self.kind = "ds"; self.dst = rg[0]; self.src = flat(rg[1:])
        elif op.startswith("buffer_load") or op.startswith("global_load"):
            self.kind = "vmem"
            if "lds" in mods or "_lds_" in op:
                self.src = flat(rg) + [("m0", 0)]
                self.dma = True
            else:
                self.dst = rg[0]; self.src = flat(rg[1:])
        elif op.startswith("buffer_store") or op.startswith("global_store") or op.startswith("buffer_atomic") or op.startswith("global_atomic"):
            self.kind = "vmem"; self.src = flat(rg)
            self.store = True
            if "atomic" in op and "sc0" in mods:
                self.dst = rg[0]
        elif op.startswith("buffer_wbl2") or op.startswith("buffer_inv"):
            self.kind = "vmem"
        elif op.startswith("s_load") or op.startswith("s_memtime") or op.startswith("s_memrealtime"):
            self.kind = "smem"; self.dst = rg[0]; self.src = flat(rg[1:])
        elif op in ("s_waitcnt", "s_nop", "s_barrier", "s_endpgm", "s_setprio", "s_sleep") or op.startswith("s_cbranch") or op == "s_branch":
            self.kind = "ctl"
        elif op.startswith("s_cmp"):
            self.kind = "salu"; self.src = flat(rg); self.dst = [("scc", 0)]
        elif op.startswith("s_"):
            self.kind = "salu"; self.dst = rg[0]; self.src = flat(rg[1:])
        elif op.startswith("v_"):
            self.kind = "valu"
            if "permlane" in op and "swap" in op:
                self.dst = rg[0] + rg[1]; self.src = rg[0] + rg[1]
            elif op.startswith("v_add_co") or op.startswith("v_addc_co") or op.startswith("v_sub_co"):
                self.dst = rg[0] + rg[1]; self.src = flat(rg[2:])
            else:
                self.dst = rg[0]; self.src = flat(rg[1:])
                if op.startswith("v_fmac") or op.startswith("v_dot2c") or "_dpp" in op:
                    self.src = self.src + rg[0]
        self.trans = any(op.startswith(x) for x in TRANS)
        self.dpp = "_dpp" in op
        self.states = 1
        if op == "s_nop":
            self.states = int(toks[0], 0) + 1
        if self.kind == "label":
            self.states = 0


def need(prod, cons):
    n = 0
    pd, cs, cd = set(prod.dst), set(cons.src), set(cons.dst)
    cc = set(cons.srcC)
    if prod.kind == "valu":
        vec = {r for r in pd if r[0] in "va"}
        sca = {r for r in pd if r[0] in ("s", "vcc")}
        if cons.kind == "mfma" and vec & (cs | cc):
            n = max(n, 2)
        if prod.trans and cons.kind == "valu" and not cons.trans and vec & cs:
            n = max(n, 1)
        if cons.kind == "valu" and "permlane" in cons.op and vec & cs:
            n = max(n, 2)
        if cons.kind == "valu" and cons.dpp and vec & cs:
            n = max(n, 2)
        if cons.kind == "valu" and ("readlane" in cons.op or "readfirstlane" in cons.op) and vec & cs:
            n = max(n, 1)
        if cons.kind == "vmem" and sca & cs:
            n = max(n, 5)
        if cons.kind == "valu" and sca & cs:
            n = max(n, 2)
        if cons.kind in ("salu",) and sca & cs:
            n = max(n, 1)
    if prod.kind == "mfma":
        big = prod.passes == 8
        if cons.kind == "valu" and pd & (cs | cd):
            n = max(n, 12 if big else 8)
        if cons.kind in ("vmem", "ds") and pd & (cs | cd):
            n = max(n, 12 if big else 8)
        if cons.kind == "mfma":
            if pd & cs:
                n = max(n, 12 if big else 8)
            if pd & cc and not (pd == cc and prod.passes == cons.passes):
                n = max(n, 10 if big else 6)
            if pd & cd and not (pd == cc):
                n = max(n, 10 if big else 6)
        if cons.kind == "valu" and set(prod.srcC) & cd:
            n = max(n, 7 if big else 3)
    if prod.kind == "salu" and ("m0", 0) in pd and getattr(cons, "dma", False):
        n = max(n, 1)
    if getattr(prod, "store", False) and ("x4" in prod.op or "x3" in prod.op):
        data = set(regs_of(prod.toks[0] if prod.op.startswith("buffer") else prod.toks[1]))
        if data & cd:
            n = max(n, 2 if cons.kind == "valu" else 1)
    return n


def fix_hazards(lines, prefix=()):
    hist = [Ins(x) for x in prefix][-24:]
    out = []
    for t in lines:
        c = Ins(t)
        if c.kind != "label":
            dist, short = 0, 0
            for p in reversed(hist):
                if dist >= 12:
                    break
                short = max(short, need(p, c) - dist)
                dist += p.states
            if short > 0:
                nop = f"s_nop {short-1}"
                out.append(nop)
                hist.append(Ins(nop))
        out.append(t)
        hist.append(c)
        hist = hist[-24:]
    return out


def check_trace(lines, name=""):
    errs = []
    hist = []
    vm, lg = [], []
    smem_pending = set()
    pend = {}
    for idx, t in enumerate(lines):
        c = Ins(t)
        if c.kind == "label":
            continue
        dist = 0
        for p in reversed(hist):
            if dist >= 12:
                break
            if need(p, c) > dist:
                errs.append(f"{name}[{idx}] hazard: '{p.text}' -> '{t}' needs {need(p,c)} has {dist}")
            dist += p.states
        if c.op == "s_waitcnt":
            m = re.search(r"vmcnt\((\d+)\)", t)
            if m:
                n = int(m.group(1))
                while len(vm) > n:
                    for r in vm.pop(0):
                        if pend.get(r, (None,))[0] == "vm" and not any(r in x for x in vm):
                            del pend[r]
            m = re.search(r"lgkmcnt\((\d+)\)", t)
            if m:
                n = int(m.group(1))
                if n == 0:
                    smem_pending.clear()
                elif smem_pending:
                    errs.append(f"{name}[{idx}] counted lgkmcnt with SMEM outstanding")
                while len(lg) > n:
                    for r in lg.pop(0):
                        if pend.get(r, (None,))[0] == "lg" and not any(r in x for x in lg):
                            del pend[r]
        for r in set(c.src) | set(c.srcC) | set(c.dst):
            if r in pend:
                errs.append(f"{name}[{idx}] '{t}' touches {r} pending from '{pend[r][1]}'")
            if r in smem_pending:
                errs.append(f"{name}[{idx}] '{t}' touches {r} pending from SMEM")
        if c.kind == "vmem":
            vm.append(list(c.dst))
            for r in c.dst:
                pend[r] = ("vm", t)
            if len(vm) > 63:
                errs.append(f"{name}[{idx}] more than 63 VMEM outstanding")
        elif c.kind == "ds":
            lg.append(list(c.dst))
            for r in c.dst:
                pend[r] = ("lg", t)
        elif c.kind == "smem":
            smem_pending |= set(c.dst)
        hist.append(c)
        hist = hist[-24:]
    return errs


def add_lgkm_waits(lines, carry=None):
    ins = [Ins(x) for x in lines]
    lg = [list(x) for x in (carry or [])]
    out = []
    n = len(ins)

    def needed(j, lgq):
        c = ins[j]
        touch = set(c.src) | set(c.srcC) | set(c.dst)
        k = -1
        for q, d in enumerate(lgq):
            if touch & set(d):
                k = q
        return k

    for i, c in enumerate(ins):
        if c.kind != "label":
            k = needed(i, lg)
            if k >= 0:
                cnt = min(len(lg) - 1 - k, 15)
                out.append(f"s_waitcnt lgkmcnt({cnt})")
                lg = lg[len(lg) - cnt:] if cnt else []
        out.append(c.text)
        if c.op == "s_waitcnt":
            m = re.search(r"lgkmcnt\((\d+)\)", c.text)
            if m:
                cnt = int(m.group(1))
                if len(lg) > cnt:
                    lg = lg[len(lg) - cnt:] if cnt else []
        if c.kind == "ds":
            lg.append(list(c.dst))
        if c.kind == "mfma":
            j = i + 1
            while j < n and ins[j].kind != "mfma":
                j += 1
            kk = -1
            for jj in range(i + 1, min(j + 1, n)):
                if ins[jj].kind != "label":
                    kk = max(kk, needed(jj, lg))
            if kk >= 0:
                cnt = min(len(lg) - 1 - kk, 15)
                out.append(f"s_waitcnt lgkmcnt({cnt})")
                lg = lg[len(lg) - cnt:] if cnt else []
    return out, lg
```

```python
import math
import struct
import sys

sys.path.insert(0, "gen")
from asmlib import R, Ins, check_trace, fix_hazards

NAME = "recurrent_scan__gqa_block_cached__glu_gated_bilinear__prompt"
MF = "v_mfma_f32_16x16x32_bf16"

CSCALE = math.log2(math.e) / math.sqrt(128.0)
XN_BYTES = 2048 * 640 * 2
ACT_OFF = 0x400000
ACT_BYTES = 32 * 182 * 4096
WF_OFF = 0x2000000
WF_BYTES = 182 * 40 * 1024
STAMP_OFF = 0x3000000
PIECE = 1056
PART = 16 * PIECE
REG_A = 0
REG_B = 4 * PART
FLAG_LDS = 8 * PART
LDS_A = FLAG_LDS + 64
LDS_B = 4 * 30720


def f2u(x):
    return struct.unpack("<I", struct.pack("<f", x))[0]


def hx(x):
    return hex(x & 0xFFFFFFFF)


class Opt:
    ones_qt = (1, 3)
    phi = 32
    thr = 2.0 ** 40
    stamps = False
    store_mod = ""


def mfma(d, a, b, c):
    return f"{MF} {d}, {a}, {b}, {c}"


def srd(base, lo, hi, nbytes):
    return [f"s_mov_b32 s{base}, {lo}", f"s_mov_b32 s{base+1}, {hi}",
            f"s_mov_b32 s{base+2}, {hx(nbytes)}", f"s_mov_b32 s{base+3}, 0x20000"]


def srd_off(base, lo, hi, off, nbytes):
    return [f"s_add_u32 s{base}, {lo}, {off}", f"s_addc_u32 s{base+1}, {hi}, 0",
            f"s_mov_b32 s{base+2}, {hx(nbytes)}", f"s_mov_b32 s{base+3}, 0x20000"]


def weave(mf, gaps):
    out = []
    for i, m in enumerate(mf):
        if m is not None:
            out.append(m)
        g = gaps[i]
        out += g["s"] + g["d"] + g["v"]
    return out


def new_gaps(n):
    return [dict(s=[], d=[], v=[]) for _ in range(n)]


def descriptor(name, nv, acc_off, nsgpr=96):
    return [f".amdhsa_kernel {name}", f"  .amdhsa_next_free_vgpr {nv}", f"  .amdhsa_next_free_sgpr {nsgpr}",
            f"  .amdhsa_accum_offset {acc_off}", "  .amdhsa_group_segment_fixed_size 0", "  .amdhsa_kernarg_size 96",
            "  .amdhsa_user_sgpr_count 2", "  .amdhsa_user_sgpr_kernarg_segment_ptr 1",
            "  .amdhsa_system_sgpr_workgroup_id_x 1", "  .amdhsa_float_denorm_mode_32 3", ".end_amdhsa_kernel"]


def stamp(o, idx):
    if not o.stamps:
        return []
    b = 64 + 4 * idx
    return ["s_waitcnt lgkmcnt(0)", f"s_memtime s[{b}:{b+1}]", f"s_memrealtime s[{b+2}:{b+3}]", "s_waitcnt lgkmcnt(0)"]


def stamp_dump(o, n, kidx, swave):
    if not o.stamps:
        return []
    L = ["s_load_dwordx2 s[4:5], s[0:1], 88", "s_waitcnt lgkmcnt(0)"]
    L += srd_off(4, "s4", "s5", hx(STAMP_OFF + kidx * 0x20000), 0x20000)
    L += ["s_lshl_b32 s3, s2, 2", f"s_add_u32 s3, s3, s{swave}", "s_lshl_b32 s3, s3, 6", "v_mov_b32 v1, s3"]
    for i in range(n):
        L += [f"v_mov_b32 v2, s{64+4*i}", f"v_mov_b32 v3, s{66+4*i}",
              f"buffer_store_dwordx2 v[2:3], v1, s[4:7], 0 offen offset:{8*i}"]
    return L


def gen_ln(o):
    L = []
    A = L.append
    A("s_cmp_ge_u32 s2, 256")
    A("s_cbranch_scc1 L_ln_end")
    A("s_load_dwordx2 s[4:5], s[0:1], 0")
    A("s_load_dwordx2 s[6:7], s[0:1], 88")
    A("s_lshl_b32 s3, s2, 3")
    A("v_lshrrev_b32 v1, 4, v0")
    A("v_add_u32 v1, s3, v1")
    A("v_and_b32 v2, 15, v0")
    A("v_mul_u32_u24 v3, 1280, v1")
    A("v_lshl_add_u32 v3, v2, 4, v3")
    A("s_waitcnt lgkmcnt(0)")
    L += srd(8, "s4", "s5", XN_BYTES)
    L += srd(12, "s6", "s7", XN_BYTES)
    for i in range(5):
        A(f"buffer_load_dwordx4 v[{8+4*i}:{11+4*i}], v3, s[8:11], 0 offen offset:{256*i}")
    A("v_lshrrev_b32 v4, 6, v1")
    A("v_mul_u32_u24 v4, 20, v4")
    A("v_lshrrev_b32 v5, 2, v2")
    A("v_add_u32 v4, v4, v5")
    A("v_bfe_u32 v5, v1, 4, 2")
    A("v_lshl_add_u32 v4, v4, 2, v5")
    A("v_lshlrev_b32 v4, 10, v4")
    A("v_and_b32 v5, 3, v2")
    A("v_lshl_add_u32 v4, v5, 8, v4")
    A("v_and_b32 v5, 15, v1")
    A("v_lshl_add_u32 v4, v5, 4, v4")
    for i in range(1, 5):
        A(f"s_mov_b32 s{15+i}, {16384*i}")
    A("s_mov_b32 s20, 0xffff0000")
    for i in range(5):
        A(f"s_waitcnt vmcnt({4-i})")
        for k in range(4):
            s = 8 + 4 * i + k
            d = 32 + 8 * i + 2 * k
            A(f"v_lshlrev_b32 v{d}, 16, v{s}")
            A(f"v_and_b32 v{d+1}, s20, v{s}")
    for k in range(4):
        A(f"v_add_f32 v{8+k}, v{32+k}, v{36+k}")
    for e in range(8, 40):
        A(f"v_add_f32 v{8+e%4}, v{8+e%4}, v{32+e}")
    red = lambda r: [x for sh in (8, 4, 2, 1) for x in
                     ("s_nop 1", f"v_add_f32_dpp v{r}, v{r}, v{r} row_ror:{sh} row_mask:0xf bank_mask:0xf")]
    L += ["v_add_f32 v8, v8, v9", "v_add_f32 v10, v10, v11", "v_add_f32 v8, v8, v10"] + red(8)
    A(f"v_mul_f32 v8, {hx(f2u(1/640))}, v8")
    for e in range(40):
        A(f"v_sub_f32 v{32+e}, v{32+e}, v8")
    for k in range(4):
        A(f"v_mul_f32 v{12+k}, v{32+k}, v{32+k}")
    for e in range(4, 40):
        A(f"v_fmac_f32 v{12+e%4}, v{32+e}, v{32+e}")
    L += ["v_add_f32 v12, v12, v13", "v_add_f32 v14, v14, v15", "v_add_f32 v12, v12, v14"] + red(12)
    A(f"v_mov_b32 v13, {hx(f2u(1e-5))}")
    A(f"v_fmac_f32 v13, {hx(f2u(1/640))}, v12")
    A("v_rsq_f32 v13, v13")
    A("s_nop 0")
    A(f"v_mul_f32 v13, {hx(f2u(CSCALE))}, v13")
    for i in range(5):
        for k in range(8):
            e = 32 + 8 * i + k
            A(f"v_mul_f32 v{e}, v{e}, v13")
        for k in range(4):
            e = 32 + 8 * i + 2 * k
            A(f"v_cvt_pk_bf16_f32 v{72+4*i+k}, v{e}, v{e+1}")
        so = "0" if i == 0 else f"s{15+i}"
        A(f"buffer_store_dwordx4 v[{72+4*i}:{75+4*i}], v4, s[12:15], {so} offen")
    A("L_ln_end:")
    A("s_endpgm")
    L = fix_hazards(L)
    return L, [L]


S_XN, S_A, S_B, S_ACT = 8, 12, 16, 20
S_KP, S_VP = 24, 26
S_OFFA, S_OFFB, S_STRA, S_STRB, S_OFFX = 28, 29, 30, 31, 32
S_LO, S_HI, S_CNT, S_MODE, S_W, S_H, S_M = 33, 34, 35, 36, 37, 38, 39
S_DK, S_DV, S_T0, S_T1, S_T2, S_ST = 40, 41, 42, 43, 44, 45
S_WF, S_SRC = 48, 52
S_WO, S_WD = 56, 58

V_LANE16, V_RA, V_RB = 1, 2, 3
V_DA, V_DB = 4, 8
V_T = 12
V_L = 20
V_MG = 24
V_ONES = 28
V_NEGM = 32
V_GACC = 48
V_P = 48
V_QACC = 128
V_Q = 128
V_S = 192
A_UACC, A_X, A_W = 0, 64, 128
A_O, A_K, A_V, A_L = 0, 128, 160, 192


def qacc(nt, qt):
    return R("v", V_QACC + ((qt * 4 + nt // 2) * 2 + nt % 2) * 4, 4)


def gemm_acc(nt, qt):
    if nt < 8:
        return qacc(nt, qt)
    if nt < 12:
        return R("v", V_GACC + ((nt - 8) * 4 + qt) * 4, 4)
    return R("a", A_UACC + ((nt - 12) * 4 + qt) * 4, 4)


def w_reads(nt, par):
    out = []
    for kk in range(2):
        for t in range(2):
            d = R("a", A_W + (nt % 4) * 8 + kk * 4 + t * 2, 2)
            rho = 2 * kk + t
            if nt < 8:
                off = par * PART + rho * 256 + (nt // 2) * 64 + (nt % 2) * 8
                out.append(f"ds_read_b64_tr_b16 {d}, v{V_RB} offset:{off}")
            else:
                off = par * PART + ((nt - 8) // 4) * 8 * PIECE + rho * 128 + ((nt - 8) % 4) * 32
                out.append(f"ds_read_b64_tr_b16 {d}, v{V_RA} offset:{off}")
    return out


def x_loads(buf):
    out = []
    for kk in range(2):
        for qt in range(4):
            d = R("a", A_X + buf * 32 + (kk * 4 + qt) * 4, 4)
            va = V_LANE16 if kk == 0 else V_T + 7
            out.append(f"buffer_load_dwordx4 {d}, v{va}, s[{S_XN}:{S_XN+3}], s{S_OFFX} offen offset:{qt*1024}")
    return out


def gemm_dma(sbase, par):
    out = []
    for reg, vb, sr, so in ((REG_B, V_DB, S_B, S_OFFB), (REG_A, V_DA, S_A, S_OFFA)):
        for r in range(4):
            out.append((f"s_add_u32 m0, s{sbase}, {reg + par*PART + r*PIECE}",
                        f"buffer_load_dwordx4 v{vb+r}, s[{sr}:{sr+3}], s{so} offen lds"))
    return out


def gemm_stage(par, nnt, last_in_body):
    n = nnt * 8
    mf, gaps = [], new_gaps(n)
    for nt in range(nnt):
        for qt in range(4):
            for kk in range(2):
                acc = gemm_acc(nt, qt)
                mf.append(mfma(acc, R("a", A_W + (nt % 4) * 8 + kk * 4, 4),
                               R("a", A_X + par * 32 + (kk * 4 + qt) * 4, 4), acc))
        nx = nt + 2
        rd = w_reads(nx, par) if nx < nnt else w_reads(nx - nnt, 1 - par)
        for k in range(4):
            gaps[nt * 8 + 2 * k + 1]["d"].append(rd[k])
        gaps[nt * 8 + 7]["s"].append("s_waitcnt lgkmcnt(3)")
    step = 6 if nnt == 16 else 2
    pos = 0
    for x in x_loads(1 - par):
        gaps[pos]["d"].append(x)
        pos += step
    gaps[pos - step + 1]["s"].append(f"s_add_u32 s{S_OFFX}, s{S_OFFX}, 8192")
    for m0, ld in gemm_dma(S_HI, par):
        p0 = pos - 1 if (pos - 1) % 8 != 7 else pos - 2
        if step == 2 and (pos - 1) % 8 == 7:
            p0 = pos - 1
        gaps[p0]["s"].append(m0)
        gaps[pos]["d"].append(ld)
        pos += step
    bar = n - 16
    assert pos - step < bar - 4, (pos, bar)
    gaps[pos]["s"].append(f"s_add_u32 s{S_OFFA}, s{S_OFFA}, s{S_STRA}")
    gaps[pos + 2]["s"].append(f"s_add_u32 s{S_OFFB}, s{S_OFFB}, s{S_STRB}")
    gaps[bar - 2]["s"].append("s_waitcnt vmcnt(8)")
    gaps[bar]["s"].append("s_barrier")
    if last_in_body:
        gaps[bar]["v"] += [f"v_add_u32 v{V_RB}, s{S_DK}, v{V_RB}", f"v_add_u32 v{V_RA}, s{S_DK}, v{V_RA}"]
        gaps[bar + 2]["s"].append(f"s_sub_u32 s{S_HI}, s{S_HI}, s{S_DK}")
        gaps[bar + 4]["s"].append(f"s_sub_u32 s{S_DK}, 0, s{S_DK}")
        gaps[bar + 6]["s"].append(f"s_sub_u32 s{S_CNT}, s{S_CNT}, 1")
        gaps[n - 2]["s"].append(f"s_cmp_lt_u32 s{S_CNT}, 2")
    return weave(mf, gaps)


def kv_switch():
    L = srd(S_A, f"s{S_KP}", f"s{S_KP+1}", 524288) + srd(S_B, f"s{S_VP}", f"s{S_VP+1}", 524288)
    L += [f"s_mov_b32 s{S_OFFA}, 0", f"s_mov_b32 s{S_OFFB}, 0", f"s_mov_b32 s{S_STRA}, 16384",
          f"s_mov_b32 s{S_STRB}, 16384", f"s_lshl_b32 s{S_T0}, s{S_W}, 12"]
    L.append(f"v_add_u32 v{V_DA}, s{S_T0}, v{V_LANE16}")
    for r in range(1, 4):
        L.append(f"v_add_u32 v{V_DA+r}, {1024*r}, v{V_DA}")
    for r in range(4):
        L.append(f"v_mov_b32 v{V_DB+r}, v{V_DA+r}")
    return L


def gemm_loop(tag, nnt):
    pre = ["s_waitcnt vmcnt(8)", "s_barrier"] + w_reads(0, 0) + w_reads(1, 0) + ["s_waitcnt lgkmcnt(4)"]
    body = gemm_stage(0, nnt, False) + gemm_stage(1, nnt, True)
    sw = kv_switch()
    code = pre + [f"L_g{tag}:"] + body + [f"s_cbranch_scc0 L_g{tag}", f"s_cmp_eq_u32 s{S_CNT}, 0",
                                          f"s_cbranch_scc1 L_g{tag}_done"] + sw + [f"s_branch L_g{tag}", f"L_g{tag}_done:"]
    br = ["s_cbranch_scc0 x"]
    trace = pre + body + br + body + br + br + br + sw + br + body + br + br + br
    return code, trace


def s_tile(T, qt):
    return V_S + (T * 4 + qt) * 4


def k_reads(T, par):
    return [f"ds_read_b128 {R('a', A_K + (T % 2) * 16 + ks * 4, 4)}, v{V_RA} offset:{par*PART + T*256 + ks*64}"
            for ks in range(4)]


def v_reads(dt, par):
    return [f"ds_read_b64_tr_b16 {R('a', A_V + (dt % 4) * 8 + rho * 2, 2)}, v{V_RB} offset:{par*PART + rho*256 + dt*32}"
            for rho in range(4)]


def attn_dma(sk, kpar, sv, vpar):
    out = []
    for reg, sb, par, sr, so in ((REG_A, sk, kpar, S_A, S_OFFA), (REG_B, sv, vpar, S_B, S_OFFB)):
        if sb is None:
            continue
        for r in range(4):
            out.append((f"s_add_u32 m0, s{sb}, {reg + par*PART + r*32}",
                        f"buffer_load_dwordx4 v{V_DA}, s[{sr}:{sr+3}], s{so} offen offset:{r*1024} lds"))
    return out


def qk_mfmas(zero_T0=False):
    mf = []
    for T in range(4):
        for qt in range(4):
            d = R("v", s_tile(T, qt), 4)
            for ks in range(4):
                c = d
                if ks == 0:
                    c = "0" if (zero_T0 and T == 0) else R("v", V_NEGM + qt * 4, 4)
                mf.append(mfma(d, R("a", A_K + (T % 2) * 16 + ks * 4, 4), R("v", V_Q + (qt * 4 + ks) * 4, 4), c))
    return mf


def p_reg(buf, kk, qt):
    return V_P + buf * 32 + (kk * 4 + qt) * 4


def pv_mfmas(o, buf, first):
    mf = []
    for dt in range(8):
        for qt in range(4):
            d = R("a", A_O + (dt * 4 + qt) * 4, 4)
            for kk in range(2):
                mf.append(mfma(d, R("a", A_V + (dt % 4) * 8 + kk * 4, 4), R("v", p_reg(buf, kk, qt), 4),
                               "0" if (first and kk == 0) else d))
    for qt in o.ones_qt:
        d = R("a", A_L + qt * 4, 4)
        for kk in range(2):
            mf.append(mfma(d, R("v", V_ONES, 4), R("v", p_reg(buf, kk, qt), 4), "0" if (first and kk == 0) else d))
    return mf


def sm_followers(o, e, buf):
    n, r = e // 4, e % 4
    T, qt = n // 4, n % 4
    s = s_tile(T, qt)
    out = []
    if r % 2:
        out.append(f"v_cvt_pk_bf16_f32 v{p_reg(buf, T // 2, qt) + (T % 2) * 2 + r // 2}, v{s+r-1}, v{s+r}")
    if qt not in o.ones_qt:
        out.append(f"v_add_f32 v{V_L+qt}, v{V_L+qt}, v{s+r}")
    return out


def attn_block(o, t, kind, fifo):
    nb = 128 + 2 * len(o.ones_qt)
    par = t % 2
    gaps = new_gaps(nb)
    do_qk = kind != "tail"
    do_pv = kind != "head"
    mf = (qk_mfmas(kind == "head") if do_qk else [None] * 64)
    mf += (pv_mfmas(o, 1 - par, kind == "first") if do_pv else [None] * (nb - 64))
    og = lambda i: 2 * i + 1
    if do_qk:
        for T in range(3):
            for k, x in enumerate(k_reads(T + 1, par)):
                gaps[og(8 * T + k)]["d"].append(x)
            gaps[16 * T + 15]["s"].append("s_waitcnt lgkmcnt(0)")
    if do_pv:
        for dt in range(8):
            base = 24 + 4 * dt
            for k, x in enumerate(v_reads(dt, 1 - par)):
                gaps[og(base + k)]["d"].append(x)
        for dt in range(8):
            n_after = 3 if (dt < 7 or kind != "tail") else 0
            gaps[64 + 8 * dt - 1]["s"].append(f"s_waitcnt lgkmcnt({n_after})")
    extra_v = {}
    if kind != "tail":
        for k, x in enumerate(k_reads(0, 1 - par)):
            gaps[og(56 + k)]["d"].append(x)
        gaps[nb - 1]["s"].append("s_waitcnt lgkmcnt(0)")
        if kind == "head":
            dm = attn_dma(S_HI, 0, None, 0)
        elif par == 0:
            dm = attn_dma(S_HI, 0, S_LO, 1)
        else:
            dm = attn_dma(S_HI, 1, S_HI, 0)
        slots = [4, 6, 7, 12, 14, 15, 20, 22]
        for (m0, ld), sl in zip(dm, slots):
            gaps[og(sl) - 1]["s"].append(m0)
            gaps[og(sl)]["d"].append(ld)
            gaps[og(sl)]["full"] = True
        gaps[50]["s"].append(f"s_add_u32 s{S_OFFA}, s{S_OFFA}, 16384")
        if kind != "head":
            gaps[52]["s"].append(f"s_add_u32 s{S_OFFB}, s{S_OFFB}, 16384")
        gaps[110]["s"].append(f"s_waitcnt vmcnt({len(dm)})")
        gaps[112]["s"].append("s_barrier")
        if par == 1:
            extra_v[47] = f"v_add_u32 v{V_RA}, s{S_DK}, v{V_RA}"
            gaps[54]["s"].append(f"s_add_u32 s{S_LO}, s{S_LO}, s{S_DK}")
            gaps[56]["s"].append(f"s_sub_u32 s{S_HI}, s{S_HI}, s{S_DK}")
            gaps[58]["s"].append(f"s_sub_u32 s{S_DK}, 0, s{S_DK}")
            if kind == "odd":
                gaps[60]["s"].append(f"s_sub_u32 s{S_CNT}, s{S_CNT}, 1")
                gaps[nb - 2]["s"].append(f"s_cmp_eq_u32 s{S_CNT}, 0")
        elif kind == "even":
            extra_v[121] = f"v_sub_u32 v{V_RB}, v{V_RB}, s{S_DK}"
    for g in range(nb):
        if g % 2 == 0 and g < 128:
            e = ((g - o.phi) // 2) % 64
            old = g < o.phi
            if (old and kind == "head") or (not old and kind == "tail"):
                pass
            else:
                s = s_tile((e // 4) // 4, (e // 4) % 4) + e % 4
                gaps[g]["v"].append(f"v_exp_f32 v{s}, v{s}")
                fifo += sm_followers(o, e, (1 - par) if old else par)
                continue
        cap = 0 if gaps[g].get("full") else 2 - len(gaps[g]["d"])
        if g in extra_v:
            gaps[g]["v"].append(extra_v[g])
            cap -= 1
        while cap > 0 and fifo:
            gaps[g]["v"].append(fifo.pop(0))
            cap -= 1
    return mf, gaps


def xlane(op, regs, tmp):
    L = []
    for sw in ("v_permlane16_swap_b32", "v_permlane32_swap_b32"):
        for i, r in enumerate(regs):
            L.append(f"v_mov_b32 v{tmp+i}, v{r}")
        for i, r in enumerate(regs):
            L.append(f"{sw} v{r}, v{tmp+i}")
        for i, r in enumerate(regs):
            L.append(f"{op} v{r}, v{r}, v{tmp+i}")
    return L


def attn_addr():
    L = [f"v_and_b32 v{V_T}, 15, v0", f"v_bfe_u32 v{V_T+1}, v0, 4, 2",
         f"v_mul_u32_u24 v{V_RA}, {PIECE}, v{V_T}", f"v_lshl_add_u32 v{V_RA}, v{V_T+1}, 4, v{V_RA}",
         f"v_add_u32 v{V_RA}, {REG_A + 2*PART}, v{V_RA}",
         f"v_bfe_u32 v{V_T}, v0, 2, 4", f"v_and_b32 v{V_T+1}, 3, v0",
         f"v_mul_u32_u24 v{V_RB}, {PIECE}, v{V_T}", f"v_lshl_add_u32 v{V_RB}, v{V_T+1}, 3, v{V_RB}",
         f"v_add_u32 v{V_RB}, {REG_B + 2*PART}, v{V_RB}",
         f"s_mul_i32 s{S_HI}, s{S_W}, {4*PIECE}", f"s_add_u32 s{S_LO}, s{S_HI}, {2*PART}",
         f"s_mov_b32 s{S_DK}, {hx(-2*PART)}", f"s_mov_b32 s{S_CNT}, 15"]
    for qt in range(4):
        L.append(f"v_mov_b32 v{V_L+qt}, 0")
    return L


def relayout():
    L = []
    A = L.append
    A(f"s_sub_u32 s{S_T0}, s{S_H}, 27")
    A(f"s_lshl_b32 s{S_T0}, s{S_T0}, 3")
    A(f"s_lshr_b32 s{S_T1}, s{S_M}, 2")
    A(f"s_add_u32 s{S_ST}, s{S_T0}, s{S_T1}")
    A(f"s_mul_i32 s{S_T2}, s{S_W}, 320")
    A(f"v_and_b32 v{V_T}, 63, v0")
    for n in range(5):
        A(f"v_add_u32 v{V_T+1}, {64*n}, v{V_T}")
        A(f"v_mul_u32_u24 v{V_T+2}, 3277, v{V_T+1}")
        A(f"v_lshrrev_b32 v{V_T+2}, 16, v{V_T+2}")
        A(f"v_mul_u32_u24 v{V_T+3}, 20, v{V_T+2}")
        A(f"v_sub_u32 v{V_T+3}, v{V_T+1}, v{V_T+3}")
        A(f"v_mul_u32_u24 v{V_T+2}, 1280, v{V_T+2}")
        A(f"v_lshl_add_u32 v{V_T+2}, v{V_T+3}, 4, v{V_T+2}")
        A(f"v_add_u32 v{40+n}, s{S_T2}, v{V_T+2}")
    A(f"v_bfe_u32 v{V_T+1}, v0, 2, 4")
    A(f"v_mul_u32_u24 v{V_T+1}, 320, v{V_T+1}")
    A(f"v_and_b32 v{V_T+2}, 3, v0")
    A(f"v_lshl_add_u32 v{V_T+1}, v{V_T+2}, 3, v{V_T+1}")
    A(f"s_mul_i32 s{S_T2}, s{S_W}, 30720")
    A(f"v_add_u32 v45, s{S_T2}, v{V_T+1}")
    A(f"s_mul_i32 s{S_T1}, s{S_W}, 10240")
    A(f"v_add_u32 v46, s{S_T1}, v{V_LANE16}")
    A(f"v_add_u32 v47, 4096, v46")
    A(f"v_add_u32 v39, 8192, v46")
    A(f"s_mov_b32 s{S_SRC+3}, 0x20000")

    def issue(rnd):
        o = [f"s_add_u32 s{S_T0}, s{S_ST}, {40*rnd}", f"s_sub_u32 s{S_T1}, s{S_T0}, 54", f"s_cmp_lt_u32 s{S_T0}, 54",
             f"s_cselect_b32 s{S_SRC}, s{S_WD}, s{S_WO}", f"s_cselect_b32 s{S_SRC+1}, s{S_WD+1}, s{S_WO+1}",
             f"s_mov_b32 s{S_SRC+2}, {4096*1280}", f"s_cselect_b32 s{S_SRC+2}, {1728*1280}, s{S_SRC+2}",
             f"s_cselect_b32 s{S_T0}, s{S_T0}, s{S_T1}", f"s_mul_i32 s{S_T0}, s{S_T0}, 40960",
             f"s_add_u32 s{S_T1}, s{S_T0}, 20480"]
        for n in range(10):
            o += [f"s_add_u32 m0, s{S_T2}, {(rnd % 3)*10240 + n*1024}", "s_nop 0",
                  f"buffer_load_dwordx4 v{40+n%5}, s[{S_SRC}:{S_SRC+3}], s{S_T0 if n < 5 else S_T1} offen lds"]
        return o

    def process(rnd, vm):
        o = [f"s_waitcnt vmcnt({vm})"]
        base = 64 + (rnd % 2) * 40
        for f in range(10):
            for t in range(2):
                o.append(f"ds_read_b64_tr_b16 {R('v', base + f*4 + t*2, 2)}, v45 offset:{(rnd % 3)*10240 + t*16*320 + f*32}")
        o += [f"s_add_u32 s{S_DV}, s{S_ST}, {40*rnd}", f"s_mul_i32 s{S_DV}, s{S_DV}, 40960", "s_waitcnt lgkmcnt(0)"]
        for f in range(10):
            va = (46, 47, 39)[f // 4]
            o.append(f"buffer_store_dwordx4 {R('v', base + f*4, 4)}, v{va}, s[{S_WF}:{S_WF+3}], s{S_DV} offen offset:{(f % 4)*1024}")
        return o

    L += issue(0) + issue(1) + issue(2)
    L += process(0, 20) + issue(3) + process(1, 30) + issue(4) + process(2, 30) + process(3, 20) + process(4, 10)
    L += ["s_barrier"]
    return L


def gen_attn(o):
    P = []
    A = P.append
    A("s_cmp_ge_u32 s2, 256")
    A("s_cbranch_scc1 L_a_end")
    A("s_load_dwordx4 s[24:27], s[0:1], 8")
    A("s_load_dwordx4 s[4:7], s[0:1], 24")
    A("s_load_dwordx4 s[60:63], s[0:1], 48")
    A(f"s_load_dwordx2 s[{S_WD}:{S_WD+1}], s[0:1], 64")
    A("s_load_dwordx2 s[46:47], s[0:1], 88")
    A("v_lshrrev_b32 v1, 6, v0")
    A("s_and_b32 s3, s2, 7")
    A(f"v_readfirstlane_b32 s{S_W}, v1")
    A(f"s_lshr_b32 s{S_T0}, s2, 6")
    A(f"s_lshl_b32 s{S_T0}, s{S_T0}, 3")
    A(f"s_add_u32 s{S_H}, s{S_T0}, s3")
    A(f"s_bfe_u32 s{S_T0}, s2, 0x30003")
    A(f"s_lshl_b32 s{S_M}, s{S_T0}, 2")
    A(f"s_add_u32 s{S_M}, s{S_M}, s{S_W}")
    A(f"v_and_b32 v{V_LANE16}, 63, v0")
    A(f"v_lshlrev_b32 v{V_LANE16}, 4, v{V_LANE16}")
    A(f"s_mov_b32 s{S_MODE}, 0")
    A("s_waitcnt lgkmcnt(0)")
    P += stamp(o, 0)
    A(f"s_mov_b32 s{S_WO}, s6")
    A(f"s_mov_b32 s{S_WO+1}, s7")
    P += srd(S_XN, "s46", "s47", XN_BYTES)
    P += srd_off(S_ACT, "s46", "s47", hx(ACT_OFF), ACT_BYTES)
    P += srd_off(S_WF, "s46", "s47", hx(WF_OFF), WF_BYTES)
    P += srd(S_B, "s4", "s5", 640 * 8192)
    A(f"s_cmp_lt_u32 s{S_W}, 2")
    A(f"s_cselect_b32 s{S_A}, s60, s62")
    A(f"s_cselect_b32 s{S_A+1}, s61, s63")
    A(f"s_cmp_lt_u32 s{S_H}, 27")
    A(f"s_cselect_b32 s{S_A+2}, {640*3456}, 0")
    A(f"s_mov_b32 s{S_A+3}, 0x20000")
    A(f"s_lshl_b32 s{S_T0}, s{S_H}, 19")
    for p in (S_KP, S_VP):
        A(f"s_add_u32 s{p}, s{p}, s{S_T0}")
        A(f"s_addc_u32 s{p+1}, s{p+1}, 0")
    A(f"s_cmp_lt_u32 s{S_H}, 27")
    A("s_cbranch_scc1 L_a_norel")
    P = fix_hazards(P)
    RL = fix_hazards(relayout(), P)

    Q = []
    A = Q.append
    A(f"v_bfe_u32 v{V_T}, v0, 5, 1")
    A(f"v_bfe_u32 v{V_T+1}, v0, 4, 1")
    A(f"v_lshlrev_b32 v{V_T}, 5, v{V_T}")
    A(f"v_lshl_add_u32 v{V_T}, v{V_T+1}, 2, v{V_T}")
    A(f"s_lshl_b32 s{S_T0}, s{S_W}, 3")
    A(f"v_add_u32 v{V_T}, s{S_T0}, v{V_T}")
    A(f"v_lshlrev_b32 v{V_T}, 13, v{V_T}")
    A(f"v_and_b32 v{V_T+1}, 15, v0")
    A(f"v_lshl_add_u32 v{V_T}, v{V_T+1}, 4, v{V_T}")
    A(f"s_lshl_b32 s{S_T0}, s{S_H}, 8")
    A(f"v_add_u32 v{V_DB}, s{S_T0}, v{V_T}")
    for r in range(1, 4):
        A(f"v_add_u32 v{V_DB+r}, {8192*r}, v{V_DB}")
    A(f"v_bfe_u32 v{V_T}, v0, 4, 1")
    A(f"v_bfe_u32 v{V_T+1}, v0, 3, 1")
    A(f"v_bfe_u32 v{V_T+2}, v0, 5, 1")
    A(f"v_lshlrev_b32 v{V_T}, 5, v{V_T}")
    A(f"v_lshl_add_u32 v{V_T}, v{V_T+1}, 2, v{V_T}")
    A(f"v_lshl_add_u32 v{V_T}, v{V_T+2}, 4, v{V_T}")
    A(f"s_and_b32 s{S_T0}, s{S_W}, 1")
    A(f"s_lshl_b32 s{S_T0}, s{S_T0}, 3")
    A(f"v_add_u32 v{V_T}, s{S_T0}, v{V_T}")
    A(f"v_mul_u32_u24 v{V_T}, 3456, v{V_T}")
    A(f"v_and_b32 v{V_T+1}, 7, v0")
    A(f"v_lshl_add_u32 v{V_T}, v{V_T+1}, 4, v{V_T}")
    A(f"s_lshl_b32 s{S_T0}, s{S_H}, 7")
    A(f"v_add_u32 v{V_DA}, s{S_T0}, v{V_T}")
    for r in range(1, 4):
        A(f"v_add_u32 v{V_DA+r}, {3456*r}, v{V_DA}")
    A(f"v_add_u32 v{V_T+7}, 4096, v{V_LANE16}")
    A(f"s_mul_i32 s{S_OFFX}, s{S_M}, {20*4096}")
    A(f"s_mov_b32 s{S_OFFA}, 0")
    A(f"s_mov_b32 s{S_OFFB}, 0")
    A(f"s_mov_b32 s{S_STRA}, {64*3456}")
    A(f"s_mov_b32 s{S_STRB}, {64*8192}")
    A(f"s_mul_i32 s{S_HI}, s{S_W}, {4*PIECE}")
    Q += x_loads(0)
    A(f"s_add_u32 s{S_OFFX}, s{S_OFFX}, 8192")
    for par in range(2):
        for m0, ld in gemm_dma(S_HI, par):
            Q += [m0, "s_nop 0", ld]
        A(f"s_add_u32 s{S_OFFA}, s{S_OFFA}, s{S_STRA}")
        A(f"s_add_u32 s{S_OFFB}, s{S_OFFB}, s{S_STRB}")
    A(f"s_add_u32 s{S_HI}, s{S_HI}, {2*PART}")
    A(f"s_mov_b32 s{S_DK}, {2*PART}")
    A(f"s_mov_b32 s{S_CNT}, 5")
    A(f"v_bfe_u32 v{V_T}, v0, 2, 4")
    A(f"v_and_b32 v{V_T+1}, 3, v0")
    A(f"v_mul_u32_u24 v{V_RB}, {PIECE}, v{V_T}")
    A(f"v_lshl_add_u32 v{V_RB}, v{V_T+1}, 4, v{V_RB}")
    A(f"v_add_u32 v{V_RB}, {REG_B}, v{V_RB}")
    A(f"v_bfe_u32 v{V_T}, v0, 2, 3")
    A(f"v_mul_u32_u24 v{V_RA}, {PIECE}, v{V_T}")
    A(f"v_lshl_add_u32 v{V_RA}, v{V_T+1}, 3, v{V_RA}")
    A(f"v_bfe_u32 v{V_T}, v0, 5, 1")
    A(f"v_lshl_add_u32 v{V_RA}, v{V_T}, 9, v{V_RA}")
    for i in range(128):
        A(f"v_mov_b32 v{V_QACC+i}, 0")
    for i in range(64):
        A(f"v_mov_b32 v{V_GACC+i}, 0")
        A(f"v_accvgpr_write_b32 a{A_UACC+i}, 0")
    for qt in range(4):
        A(f"v_mov_b32 v{V_MG+qt}, 0xff800000")
    A(f"v_and_b32 v{V_T}, 3, v0")
    A(f"v_cmp_eq_u32 vcc, 0, v{V_T}")
    A(f"v_mov_b32 v{V_T}, 0x3f803f80")
    for i in range(4):
        A(f"v_cndmask_b32 v{V_ONES+i}, 0, v{V_T}, vcc")
    A(f"s_cmp_lt_u32 s{S_H}, 27")
    A("s_cbranch_scc0 L_a_qonly")
    Q = fix_hazards(Q)

    GF, GFt = gemm_loop("f", 16)
    GQ, GQt = gemm_loop("q", 8)

    H = ["s_nop 7", f"s_mul_i32 s{S_T0}, s{S_M}, 182", f"s_lshl_b32 s{S_T1}, s{S_H}, 1",
         f"s_add_u32 s{S_T0}, s{S_T0}, s{S_T1}", f"s_lshl_b32 s{S_T0}, s{S_T0}, 12", f"s_add_u32 s{S_T1}, s{S_T0}, 4096"]
    for m in range(2):
        for qt in range(4):
            tb = 112 + ((m * 4 + qt) % 2) * 8
            for e in range(2):
                for r in range(4):
                    H.append(f"v_accvgpr_read_b32 v{tb+e*4+r}, a{A_UACC + ((2*m+e)*4+qt)*4 + r}")
            for e in range(2):
                for r in range(4):
                    H.append(f"v_mul_f32 v{tb+e*4+r}, v{tb+e*4+r}, v{V_GACC + ((2*m+e)*4+qt)*4 + r}")
            d = V_GACC + ((2 * m) * 4 + qt) * 4
            for k in range(4):
                H.append(f"v_cvt_pk_bf16_f32 v{d+k}, v{tb+2*k}, v{tb+2*k+1}")
            H.append(f"buffer_store_dwordx4 {R('v', d, 4)}, v{V_LANE16}, s[{S_ACT}:{S_ACT+3}], s{S_T0+m} offen offset:{qt*1024}{o.store_mod}")
    H = fix_hazards(H)

    QE = ["s_nop 7", "s_waitcnt lgkmcnt(0)"]
    for i in range(64):
        QE.append(f"v_cvt_pk_bf16_f32 v{V_Q+i}, v{V_QACC+2*i}, v{V_QACC+2*i+1}")
    QE += stamp(o, 1)

    fifo = []
    HD = attn_addr() + k_reads(0, 0) + ["s_waitcnt lgkmcnt(0)"]
    mf, gaps = attn_block(o, 0, "head", fifo)
    mx = []
    for qt in range(4):
        s = s_tile(0, qt)
        mx += [f"v_max3_f32 v{V_T+qt}, v{s}, v{s+1}, v{s+2}"]
    for qt in range(4):
        s = s_tile(0, qt)
        mx += [f"v_max3_f32 v{V_T+qt}, v{V_T+qt}, v{s+3}, v{V_MG+qt}"]
    mx += xlane("v_max_f32", [V_T + i for i in range(4)], V_T + 4)
    for qt in range(4):
        for r in range(4):
            mx.append(f"v_sub_f32 v{V_NEGM+qt*4+r}, 0, v{V_T+qt}")
    for qt in range(4):
        for r in range(4):
            mx.append(f"v_sub_f32 v{s_tile(0, qt)+r}, v{s_tile(0, qt)+r}, v{V_T+qt}")
    gaps[15]["v"] += mx
    HD = fix_hazards(HD + weave(mf, gaps), QE)
    B1 = weave(*attn_block(o, 1, "first", fifo))
    f0 = list(fifo)
    BE = weave(*attn_block(o, 2, "even", fifo))
    BO = weave(*attn_block(o, 3, "odd", fifo))
    assert fifo == f0, (fifo, f0)
    TL = fix_hazards(weave(*attn_block(o, 32, "tail", fifo)), BO)
    assert not fifo

    E = ["s_nop 7"] + stamp(o, 2)
    vq = [qt for qt in range(4) if qt not in o.ones_qt]
    E += xlane("v_add_f32", [V_L + q for q in vq], V_T + 4)
    for qt in o.ones_qt:
        E.append(f"v_accvgpr_read_b32 v{V_L+qt}, a{A_L+qt*4}")
    E.append(f"s_mov_b32 s{S_T0}, {hx(f2u(o.thr))}")
    E.append("s_mov_b64 s[4:5], 0")
    for qt in range(4):
        E += [f"v_cmp_nge_f32 vcc, s{S_T0}, v{V_L+qt}", f"v_rcp_f32 v{V_T+qt}, v{V_L+qt}", "s_or_b64 s[4:5], s[4:5], vcc"]
    E += ["s_cmp_lg_u64 s[4:5], 0", f"s_cselect_b32 s{S_T2}, 1, 0", f"s_lshl_b32 s{S_T0}, s{S_W}, 2",
          f"v_mov_b32 v{V_T+4}, s{S_T0}", f"v_mov_b32 v{V_T+5}, s{S_T2}", f"v_add_u32 v{V_T+4}, {FLAG_LDS}, v{V_T+4}",
          f"ds_write_b32 v{V_T+4}, v{V_T+5}",
          f"s_mul_i32 s{S_T0}, s{S_M}, 182", f"s_lshl_b32 s{S_T1}, s{S_H}, 2", f"s_add_u32 s{S_T0}, s{S_T0}, s{S_T1}",
          f"s_add_u32 s{S_T0}, s{S_T0}, 54", f"s_lshl_b32 s{S_T0}, s{S_T0}, 12"]
    n = 0
    for m in range(4):
        for qt in range(4):
            tb = V_S + (n % 4) * 8
            d = V_P + (n % 8) * 4
            n += 1
            for e in range(2):
                for r in range(4):
                    E.append(f"v_accvgpr_read_b32 v{tb+e*4+r}, a{A_O + ((2*m+e)*4+qt)*4 + r}")
            for k in range(8):
                E.append(f"v_mul_f32 v{tb+k}, v{tb+k}, v{V_T+qt}")
            for k in range(4):
                E.append(f"v_cvt_pk_bf16_f32 v{d+k}, v{tb+2*k}, v{tb+2*k+1}")
            E.append(f"buffer_store_dwordx4 {R('v', d, 4)}, v{V_LANE16}, s[{S_ACT}:{S_ACT+3}], s{S_T0} offen offset:{qt*1024}{o.store_mod}")
        E.append(f"s_add_u32 s{S_T0}, s{S_T0}, 4096")
    E += [f"v_mov_b32 v{V_T+4}, {FLAG_LDS}", "s_waitcnt lgkmcnt(0)", "s_barrier",
          f"ds_read_b128 {R('v', V_T, 4)}, v{V_T+4}", "s_waitcnt lgkmcnt(0)",
          f"v_or_b32 v{V_T}, v{V_T}, v{V_T+1}", f"v_or3_b32 v{V_T}, v{V_T}, v{V_T+2}, v{V_T+3}", "s_nop 0",
          f"v_readfirstlane_b32 s{S_T0}, v{V_T}", "s_nop 0", f"s_andn2_b32 s{S_T0}, s{S_T0}, s{S_MODE}",
          f"s_cmp_eq_u32 s{S_T0}, 0", "s_cbranch_scc0 L_a_redo"]
    E = fix_hazards(E, TL)
    END = stamp(o, 3) + stamp_dump(o, 4, 1, S_W) + ["L_a_end:", "s_endpgm"]

    RD0 = [f"s_mov_b32 s{S_MODE}, 1", "s_waitcnt vmcnt(0)", f"s_mov_b32 s{S_T0}, 0",
           f"v_and_b32 v{V_T}, 15, v0", f"v_bfe_u32 v{V_T+1}, v0, 4, 2", f"v_lshlrev_b32 v{V_T}, 8, v{V_T}",
           f"v_lshl_add_u32 v{V_T}, v{V_T+1}, 4, v{V_T}"]
    RDL = []
    for ks in range(4):
        RDL.append(f"buffer_load_dwordx4 {R('a', A_K+ks*4, 4)}, v{V_T}, s[{S_A}:{S_A+3}], s{S_T0} offen offset:{ks*64}")
    RDL.append("s_waitcnt vmcnt(0)")
    RDL += qk_mfmas(True)[:16]
    for qt in range(4):
        s = s_tile(0, qt)
        RDL += [f"v_max3_f32 v{V_MG+qt}, v{s}, v{s+1}, v{V_MG+qt}", f"v_max3_f32 v{V_MG+qt}, v{s+2}, v{s+3}, v{V_MG+qt}"]
    RDL += [f"s_add_u32 s{S_T0}, s{S_T0}, 4096", f"s_cmp_lt_u32 s{S_T0}, 524288"]
    RDL = fix_hazards(RDL)
    RD1 = [f"s_mul_i32 s{S_HI}, s{S_W}, {4*PIECE}", f"s_add_u32 s{S_HI}, s{S_HI}, {2*PART}",
           f"s_mov_b32 s{S_OFFA}, 0", f"s_mov_b32 s{S_OFFB}, 0"]
    for par in range(2):
        for m0, ld in attn_dma(S_HI, par, S_HI, par):
            RD1 += [m0, "s_nop 0", ld]
        RD1 += [f"s_add_u32 s{S_OFFA}, s{S_OFFA}, 16384", f"s_add_u32 s{S_OFFB}, s{S_OFFB}, 16384"]
    RD1 += ["s_waitcnt vmcnt(0)", "s_barrier"]

    code = (P + RL + ["L_a_norel:"] + Q + GF + H + ["s_branch L_a_qe", "L_a_qonly:"] + GQ + ["L_a_qe:"] + QE +
            ["L_a_attn:"] + HD + B1 + [".p2align 6", "L_a_loop:"] + BE + BO + ["s_cbranch_scc0 L_a_loop"] + TL + E + END +
            ["L_a_redo:"] + RD0 + ["L_a_redo_loop:"] + RDL + ["s_cbranch_scc1 L_a_redo_loop"] + RD1 + ["s_branch L_a_attn"])
    br = ["s_branch x"]
    att = HD + B1 + BE + BO + br + BE + BO + br + TL + E
    traces = [P + Q + GFt + H + br + QE + att + END,
              P + RL + Q + GQt + QE + att + RD0 + RDL + br + RDL + br + RD1 + br + att + END]
    return code, traces


def gen_out(o):
    SA, SW, SX, SO = 8, 12, 16, 20
    W_, M_, N_, OA, OW, T0, T1 = 24, 25, 26, 28, 30, 32, 33
    VA, VW, VL, VT = 2, 6, 8, 12
    ACC_S, ACC_G, VRING = 24, 104, 184

    def areg(step, mu):
        return R("a", (step % 8) * 16 + mu * 4, 4)

    def wreg(step, nt):
        if nt < 4:
            return R("a", 128 + (step % 8) * 16 + nt * 4, 4)
        return R("v", VRING + (step % 8) * 4, 4)

    L = []
    A = L.append
    A("s_cmp_ge_u32 s2, 256")
    A("s_cbranch_scc1 L_b_end")
    A("s_load_dwordx2 s[4:5], s[0:1], 88")
    A("s_load_dwordx2 s[6:7], s[0:1], 0")
    A("s_load_dwordx2 s[34:35], s[0:1], 72")
    A("v_lshrrev_b32 v1, 6, v0")
    A("s_and_b32 s3, s2, 7")
    A(f"v_readfirstlane_b32 s{W_}, v1")
    A(f"s_lshr_b32 s{T0}, s2, 6")
    A(f"s_lshl_b32 s{M_}, s3, 2")
    A(f"s_add_u32 s{M_}, s{M_}, s{T0}")
    A(f"s_bfe_u32 s{N_}, s2, 0x30003")
    A(f"v_and_b32 v{VW}, 63, v0")
    A(f"v_lshlrev_b32 v{VW}, 4, v{VW}")
    A(f"v_add_u32 v{VW+1}, 4096, v{VW}")
    for mu in range(4):
        A(f"s_add_u32 s{T0}, s{W_}, {mu}")
        A(f"s_and_b32 s{T0}, s{T0}, 3")
        A(f"s_lshl_b32 s{T1}, s{T0}, 10")
        A(f"v_add_u32 v{VA+mu}, s{T1}, v{VW}")
        A(f"s_mul_i32 s{T1}, s{T0}, 30720")
        if mu:
            A(f"s_add_u32 s{T1}, s{T1}, {(mu-1)*10240}")
        A(f"v_add_u32 v{VL+mu}, s{T1}, v{VW}")
    A(f"s_mul_i32 s{OA}, s{M_}, 182")
    A(f"s_add_u32 s{OA}, s{OA}, s{W_}")
    A(f"s_lshl_b32 s{OA}, s{OA}, 12")
    A(f"s_mul_i32 s{OW}, s{W_}, 40")
    A(f"s_mul_i32 s{T0}, s{N_}, 5")
    A(f"s_add_u32 s{OW}, s{OW}, s{T0}")
    A(f"s_lshl_b32 s{OW}, s{OW}, 10")
    A("s_waitcnt lgkmcnt(0)")
    L += stamp(o, 0)
    L += srd_off(SA, "s4", "s5", hx(ACT_OFF), ACT_BYTES)
    L += srd_off(SW, "s4", "s5", hx(WF_OFF), WF_BYTES)
    L += srd(SX, "s6", "s7", XN_BYTES)
    L += srd(SO, "s34", "s35", XN_BYTES)

    def ksrel(step):
        return 4 * step if step < 14 else 54 + 4 * (step - 14)

    def loads(step):
        k = ksrel(step)
        sc = [f"s_add_u32 s{OA+1}, s{OA}, {k*4096}", f"s_add_u32 s{OW+1}, s{OW}, {k*40960}"]
        if step == 13:
            sc += [f"s_cmp_lt_u32 s{W_}, 2", f"s_cselect_b32 s{OA+1}, s{OA+1}, 0x7ff00000",
                   f"s_cselect_b32 s{OW+1}, s{OW+1}, 0x7ff00000"]
        ld = []
        for nt in range(5):
            ld.append(f"buffer_load_dwordx4 {wreg(step, nt)}, v{VW + nt//4}, s[{SW}:{SW+3}], s{OW+1} offen offset:{(nt % 4)*1024}")
        for mu in range(4):
            ld.append(f"buffer_load_dwordx4 {areg(step, mu)}, v{VA+mu}, s[{SA}:{SA+3}], s{OA+1} offen")
        return sc, ld

    for st in range(6):
        sc, ld = loads(st)
        L += sc + ld
    A(f"s_lshl_b32 s{T0}, s{M_}, 2")
    A(f"s_add_u32 s{T0}, s{T0}, s{W_}")
    A(f"s_mul_i32 s{T0}, s{T0}, {16*1280}")
    A(f"s_mul_i32 s{T1}, s{N_}, 160")
    A(f"s_add_u32 s{T0}, s{T0}, s{T1}")
    A(f"v_and_b32 v{VT}, 15, v0")
    A(f"v_mul_u32_u24 v1, 1280, v{VT}")
    A(f"v_bfe_u32 v{VT}, v0, 4, 2")
    A(f"v_lshl_add_u32 v1, v{VT}, 3, v1")
    A(f"v_add_u32 v1, s{T0}, v1")
    XR = 216
    for p in range(23):
        outstanding_after = min(2, 22 - p) * 18 + (5 if p >= 21 else 0)
        A(f"s_waitcnt vmcnt({outstanding_after})")
        accb = ACC_G if p < 7 else ACC_S
        first = p in (0, 7)
        mf = []
        for nt in range(5):
            for mu in range(4):
                d = R("v", accb + (mu * 5 + nt) * 4, 4)
                for e in range(2):
                    mf.append(mfma(d, wreg(2 * p + e, nt), areg(2 * p + e, mu), "0" if (first and e == 0) else d))
        gaps = new_gaps(40)
        if p + 3 < 23:
            for e in range(2):
                sc, ld = loads(2 * (p + 3) + e)
                gaps[20 * e]["s"] += sc
                for k, x in enumerate(ld):
                    gaps[20 * e + 1 + 2 * k]["d"].append(x)
        if p == 20:
            for nt in range(5):
                gaps[2 * nt]["d"].append(f"buffer_load_dwordx2 {R('v', XR+2*nt, 2)}, v1, s[{SX}:{SX+3}], 0 offen offset:{nt*32}")
        L += weave(mf, gaps)
    L += stamp(o, 1)
    for half, accb in ((0, ACC_G), (1, ACC_S)):
        for mu in range(1, 4):
            for nt in range(5):
                A(f"ds_write_b128 v{VL+mu}, {R('v', accb + (mu*5+nt)*4, 4)} offset:{(half*5+nt)*1024}")
    A("s_waitcnt lgkmcnt(0)")
    A("s_barrier")
    for half, accb in ((0, ACC_G), (1, ACC_S)):
        for sl in range(3):
            for nt in range(5):
                A(f"ds_read_b128 {R('v', accb + ((sl+1)*5+nt)*4, 4)}, v{VL} offset:{sl*10240 + (half*5+nt)*1024}")
    A("s_waitcnt lgkmcnt(15)")
    for sl in range(3):
        for i in range(20):
            A(f"v_add_f32 v{ACC_G+i}, v{ACC_G+i}, v{ACC_G+(sl+1)*20+i}")
    A(f"s_mov_b32 s{T0}, {hx(f2u(-math.log2(math.e)/CSCALE**2))}")
    A(f"s_mov_b32 s{T1}, {hx(f2u(1/CSCALE**2))}")
    E0 = ACC_G + 20
    for i in range(20):
        A(f"v_mul_f32 v{E0+i}, s{T0}, v{ACC_G+i}")
    for i in range(20):
        A(f"v_exp_f32 v{E0+i}, v{E0+i}")
    for i in range(20):
        A(f"v_add_f32 v{E0+i}, 1.0, v{E0+i}")
    for i in range(20):
        A(f"v_rcp_f32 v{E0+i}, v{E0+i}")
    for i in range(20):
        A(f"v_mul_f32 v{ACC_G+i}, s{T1}, v{ACC_G+i}")
    for i in range(20):
        A(f"v_mul_f32 v{ACC_G+i}, v{ACC_G+i}, v{E0+i}")
    A("s_waitcnt vmcnt(0) lgkmcnt(0)")
    for sl in range(3):
        for i in range(20):
            A(f"v_add_f32 v{ACC_S+i}, v{ACC_S+i}, v{ACC_S+(sl+1)*20+i}")
    A(f"s_mov_b32 s{T0}, 0xffff0000")
    for nt in range(5):
        for k in range(2):
            A(f"v_lshlrev_b32 v{E0+4*nt+2*k}, 16, v{XR+2*nt+k}")
            A(f"v_and_b32 v{E0+4*nt+2*k+1}, s{T0}, v{XR+2*nt+k}")
        for r in range(4):
            i = 4 * nt + r
            A(f"v_fmac_f32 v{E0+i}, v{ACC_S+i}, v{ACC_G+i}")
        for k in range(2):
            A(f"v_cvt_pk_bf16_f32 v{XR+2*nt+k}, v{E0+4*nt+2*k}, v{E0+4*nt+2*k+1}")
        A(f"buffer_store_dwordx2 {R('v', XR+2*nt, 2)}, v1, s[{SO}:{SO+3}], 0 offen offset:{nt*32}")
    L += stamp(o, 2) + stamp_dump(o, 3, 2, W_)
    A("L_b_end:")
    A("s_endpgm")
    L = fix_hazards(L)
    return L, [L]


HEADER = """; Kernarg layout (96 bytes, pointers only, base s[0:1]):
;   72 d_out  80 d_debug  88 d_ws
; main kernel: Q / gate / up projections, attention per (head, 256 rows), Wo and Wd rewritten as fragments.
; out_kernel: x + (O Wo) * silu(h Wd).
"""


def generate(o):
    kernels = [("ln_kernel", gen_ln, (256, 128, 0), (96, 96)),
               (NAME + "_kernel", gen_attn, (256, 256, LDS_A), (512, 256)),
               ("out_kernel", gen_out, (256, 256, LDS_B), (512, 256))]
    out = [HEADER.rstrip()]
    for name, _, (g, b, lds), _ in kernels:
        out.append(f"; @launch kernel={name} grid=({g},1,1) block=({b},1,1) lds={lds}")
    out += ['.amdgcn_target "amdgcn-amd-amdhsa--gfx950"', ".text"]
    errs = []
    for name, fn, _, _ in kernels:
        code, traces = fn(o)
        for i, t in enumerate(traces):
            errs += check_trace(t, f"{name[:8]}#{i}")
        out += [f".globl {name}", ".p2align 8", f".type {name},@function", f"{name}:"]
        out += [x if x.endswith(":") or x.startswith(".") else "  " + x for x in code]
    out += ['.section .rodata,"a"']
    for name, _, _, (nv, ao) in kernels:
        out += [".p2align 6"] + descriptor(name, nv, ao)
    if errs:
        print("\n".join(errs[:40]), file=sys.stderr)
        raise SystemExit(f"{len(errs)} checker errors")
    return "\n".join(out) + "\n"


if __name__ == "__main__":
    o = Opt()
    path = f"cdna_kernels/{NAME}.s"
    for a in sys.argv[1:]:
        k, v = a.split("=", 1)
        if k == "out":
            path = v
        else:
            setattr(o, k, eval(v))
    open(path, "w").write(generate(o))
    print("wrote", path)
```
